```python
import torch

def _softmax(x, axis=-1):
    return torch.softmax(x, dim=axis)
def _gelu(x):
    return torch.nn.functional.gelu(x, approximate="tanh")
def _silu(x):
    return torch.nn.functional.silu(x)
def _sigmoid(x):
    return torch.sigmoid(x)
def _layernorm(x, axis=-1, eps=1e-5):
    m = x.mean(dim=axis, keepdim=True)
    v = x.var(dim=axis, keepdim=True, unbiased=False)
    return (x - m) / torch.sqrt(v + eps)
def _scatter_add(tgt, idx, src, axis=0):
    return tgt.clone().index_add_(axis, idx, src)
def _segment_sum(src, seg, n):
    out = torch.zeros((n,) + src.shape[1:], dtype=src.dtype)
    return out.index_add_(0, seg, src)
def _pad(x, pw):
    flat = tuple(v for pair in reversed(pw) for v in pair)
    return torch.nn.functional.pad(x, flat)

kernel_name = 'standalone__instancenorm__sampling'

def setup_inputs():

    _w = (lambda a: (lambda t: t.to(torch.bfloat16) if t.is_floating_point() else t)(torch.as_tensor(a)))
    B, C, H, W = 64, 512, 32, 32
    return {
        "x": _w(abs((lambda *s: torch.randn(*s, dtype=torch.bfloat16) * 0.05)(B, C, H, W))),
        "g": _w((lambda *s: torch.randn(*s, dtype=torch.bfloat16) * 0.05)(C) + 1.0),
        "b": _w((lambda *s: torch.randn(*s, dtype=torch.bfloat16) * 0.4)(C)),
    }

def reference(x, g, b):
    mu = x.mean(axis=(-2, -1), keepdims=True)
    var = ((x - mu) ** 2).mean(axis=(-2, -1), keepdims=True)
    xhat = (x - mu) / torch.sqrt(var + 1e-5)
    return xhat * g.reshape(1, -1, 1, 1) + b.reshape(1, -1, 1, 1)
```

```python
import re, sys
NAME = "standalone__instancenorm__sampling_kernel"

def wrap(asm, nwaves, q, k, gid_sgpr="s12"):
    m = re.search(r"; @launch grid=\((\d+),1,1\) block=\((\d+),1,1\) lds=(\d+)", asm)
    g, b, lds = m.groups()
    asm = asm.replace(m.group(0), f"; @launch kernel={NAME} grid=({g},1,1) block=({b},1,1) lds={lds}\n; @launch kernel=diagb_kernel grid=(1,1,1) block=(1024,1,1) lds=64")
    asm = asm.replace(f"{NAME}:\n", f"{NAME}:\n    s_memrealtime s[40:41]\n    s_load_dwordx2 s[44:45], s[0:1], 40\n")
    asm = asm.replace("L_done:\n", f"""    s_waitcnt vmcnt(0)
    s_memrealtime s[42:43]
    s_lshl_b32 s46, {gid_sgpr}, 3
    v_mov_b32 v0, s46
    s_waitcnt lgkmcnt(0)
    v_mov_b32 v2, s40
    v_mov_b32 v3, s42
    s_mov_b64 exec, 1
    global_store_dwordx2 v0, v[2:3], s[44:45]
L_done:
""")
    asm = re.sub(r"\.amdhsa_next_free_sgpr \d+", ".amdhsa_next_free_sgpr 48", asm)
    per = nwaves // 1024
    body = []
    e = body.append
    e(".text")
    e(".globl diagb_kernel")
    e(".p2align 8")
    e(".type diagb_kernel,@function")
    e("diagb_kernel:")
    e("    s_memrealtime s[20:21]")
    e("    s_load_dwordx4 s[4:7], s[0:1], 32")
    e("    s_cmp_ge_u32 s2, 1")
    e("    s_cbranch_scc1 LB_done")
    e("    v_lshlrev_b32 v1, 3, v0")
    e("    v_mov_b32 v4, -1")
    e("    v_mov_b32 v5, 0")
    e("    v_mov_b32 v6, -1")
    e("    v_mov_b32 v7, 0")
    e("    v_mov_b32 v8, 0")
    e("    ds_write_b128 v8, v[4:7]")
    e("    s_waitcnt lgkmcnt(0)")
    e("    s_barrier")
    for i in range(per):
        e("    global_load_dwordx2 v[2:3], v1, s[6:7]")
        e("    v_add_u32 v1, 8192, v1")
        e("    s_waitcnt vmcnt(0)")
        e("    v_min_u32 v4, v4, v2")
        e("    v_max_u32 v5, v5, v2")
        e("    v_min_u32 v6, v6, v3")
        e("    v_max_u32 v7, v7, v3")
    e("    ds_min_u32 v8, v4")
    e("    ds_max_u32 v8, v5 offset:4")
    e("    ds_min_u32 v8, v6 offset:8")
    e("    ds_max_u32 v8, v7 offset:12")
    e("    s_waitcnt lgkmcnt(0)")
    e("    s_barrier")
    e("    ds_read_b128 v[4:7], v8")
    e("    s_waitcnt lgkmcnt(0)")
    e("    v_readfirstlane_b32 s8, v4")
    e("    v_readfirstlane_b32 s9, v5")
    e("    v_readfirstlane_b32 s10, v6")
    e("    v_readfirstlane_b32 s11, v7")
    e("    s_nop 3")
    e("    s_sub_u32 s12, s11, s8")
    e("    s_sub_u32 s13, s20, s11")
    e("    s_sub_u32 s14, s9, s8")
    e("    s_sub_u32 s15, s10, s8")
    e("    s_sub_u32 s27, s20, s8")
    e("    v_mov_b32 v4, s12")
    e("    v_mov_b32 v5, s13")
    e("    v_mov_b32 v6, s14")
    e("    v_mov_b32 v7, s15")
    e("    v_cmp_eq_u32 vcc, 0, v0")
    e("    s_and_saveexec_b64 s[16:17], vcc")
    e("    s_cbranch_execz LB_done")
    e("    global_store_dwordx4 v8, v[4:7], s[4:5] offset:-512")
    e("    global_store_dwordx4 v8, v[4:7], s[4:5]")
    e(f"    s_mul_i32 s18, s{27 if q == 5 else 11+q}, {k}")
    e("    s_min_u32 s18, s18, 100000")
    e("    s_memrealtime s[22:23]")
    e("    s_waitcnt lgkmcnt(0)")
    e("LB_spin:")
    e("    s_memrealtime s[24:25]")
    e("    s_waitcnt lgkmcnt(0)")
    e("    s_sub_u32 s26, s24, s22")
    e("    s_cmp_lt_u32 s26, s18")
    e("    s_cbranch_scc1 LB_spin")
    e("LB_done:")
    e("    s_endpgm")
    kd = """.amdhsa_kernel diagb_kernel
  .amdhsa_next_free_vgpr 16
  .amdhsa_next_free_sgpr 32
  .amdhsa_accum_offset 16
  .amdhsa_group_segment_fixed_size 0
  .amdhsa_kernarg_size 48
  .amdhsa_user_sgpr_count 2
  .amdhsa_user_sgpr_kernarg_segment_ptr 1
  .amdhsa_system_sgpr_workgroup_id_x 1
.end_amdhsa_kernel
"""
    asm = asm.replace('.section .rodata,"a"', "\n".join(body) + '\n.section .rodata,"a"')
    asm = asm.rstrip() + "\n.p2align 6\n" + kd
    return asm

if __name__ == "__main__":
    src, nw, q, k, out = sys.argv[1], int(sys.argv[2]), int(sys.argv[3]), int(sys.argv[4]), sys.argv[5]
    open(out, "w").write(wrap(open(src).read(), nw, q, k))
```

```python
import re, sys
NAME = "standalone__instancenorm__sampling_kernel"

def wrap(asm, q, k):
    m = re.search(r"; @launch grid=\((\d+),1,1\) block=\((\d+),1,1\) lds=(\d+)", asm)
    g, b, lds = m.groups()
    asm = asm.replace(m.group(0), f"; @launch kernel=probe_kernel grid=(1,1,1) block=(64,1,1) lds=0\n; @launch kernel={NAME} grid=({g},1,1) block=({b},1,1) lds={lds}\n; @launch kernel=report_kernel grid=(1,1,1) block=(64,1,1) lds=0")
    body = []
    e = body.append
    def head(n):
        e(".text"); e(f".globl {n}"); e(".p2align 8"); e(f".type {n},@function"); e(f"{n}:")
    head("probe_kernel")
    e("    s_load_dwordx2 s[4:5], s[0:1], 0")
    e("    s_load_dwordx2 s[6:7], s[0:1], 24")
    e("    s_load_dwordx2 s[8:9], s[0:1], 40")
    e("    s_cmp_ge_u32 s2, 1")
    e("    s_cbranch_scc1 LP_done")
    e("    s_waitcnt lgkmcnt(0)")
    for bi, (lo, mask, tot, lowc) in enumerate(((4, 40, 41, 44), (6, 42, 43, 45))):
        e(f"    s_mov_b32 s{mask}, 0")
        e(f"    s_mov_b32 s{tot}, 0")
        e(f"    s_mov_b32 s{lowc}, 0")
        e("    s_mov_b32 s10, 0")
        e(f"LP_page{bi}:")
        e("    s_lshl_b32 s11, s10, 21")
        e(f"    s_add_u32 s12, s{lo}, s11")
        e(f"    s_addc_u32 s13, s{lo+1}, 0")
        e("    s_load_dword s14, s[12:13], 0x8080")
        e("    s_waitcnt lgkmcnt(0)")
        e("    s_mov_b32 s30, 0")
        e("    s_mov_b32 s31, 0")
        for l in range(8):
            for c in range(2):
                off = (l << 8) | ((l & 1) << 11) | ((l & 2) << 11) | ((l & 4) << 12) | (c << 13)
                e("    s_memtime s[16:17]")
                e("    s_waitcnt lgkmcnt(0)")
                e(f"    s_load_dword s14, s[12:13], {off}")
                e("    s_waitcnt lgkmcnt(0)")
                e("    s_memtime s[18:19]")
                e("    s_waitcnt lgkmcnt(0)")
                e("    s_sub_u32 s20, s18, s16")
                e(f"    s_add_u32 s{30+c}, s{30+c}, s20")
                e("    s_cmp_lt_u32 s20, 800")
                e(f"    s_addc_u32 s{lowc}, s{lowc}, 0")
        e(f"    s_add_u32 s{tot}, s{tot}, s30")
        e(f"    s_add_u32 s{tot}, s{tot}, s31")
        e("    s_cmp_gt_u32 s30, s31")
        e("    s_cselect_b32 s21, 1, 0")
        e("    s_lshl_b32 s21, s21, s10")
        e(f"    s_or_b32 s{mask}, s{mask}, s21")
        e("    s_add_u32 s10, s10, 1")
        e("    s_cmp_lt_u32 s10, 32")
        e(f"    s_cbranch_scc1 LP_page{bi}")
        e(f"    s_lshr_b32 s{tot}, s{tot}, 9")
    e("    s_getreg_b32 s46, hwreg(HW_REG_XCC_ID)")
    e("    v_mov_b32 v0, 0")
    for i in range(8):
        src = [40, 41, 42, 43, 44, 45, 46, 46][i]
        e(f"    v_mov_b32 v{4+i}, s{src}")
    e("    s_mov_b64 exec, 1")
    e("    global_store_dwordx4 v0, v[4:7], s[8:9]")
    e("    global_store_dwordx4 v0, v[8:11], s[8:9] offset:16")
    e("LP_done:")
    e("    s_endpgm")
    head("report_kernel")
    e("    s_load_dwordx2 s[4:5], s[0:1], 0")
    e("    s_load_dwordx2 s[6:7], s[0:1], 24")
    e("    s_load_dwordx4 s[8:11], s[0:1], 32")
    e("    s_cmp_ge_u32 s2, 1")
    e("    s_cbranch_scc1 LR_done")
    e("    s_waitcnt lgkmcnt(0)")
    e("    s_load_dwordx8 s[16:23], s[10:11], 0")
    e("    s_waitcnt lgkmcnt(0)")
    e("    s_xor_b32 s24, s16, 0xaaaaaaaa")
    e("    s_bcnt1_i32_b32 s24, s24")
    e("    s_xor_b32 s25, s18, 0xaaaaaaaa")
    e("    s_bcnt1_i32_b32 s25, s25")
    e("    s_xor_b32 s26, s16, s18")
    e("    s_bcnt1_i32_b32 s26, s26")
    e("    s_mov_b32 s27, s17")
    e("    s_mov_b32 s28, s19")
    e("    s_bfe_u32 s29, s6, 0x60015")
    e("    s_bfe_u32 s30, s4, 0x60015")
    e("    s_mul_i32 s31, s24, 40")
    e("    s_add_u32 s31, s31, s25")
    e("    v_mov_b32 v0, 0")
    for i in range(16):
        e(f"    v_mov_b32 v{4+i}, s{16+i}")
    e("    s_mov_b64 exec, 1")
    for i in range(4):
        e(f"    global_store_dwordx4 v0, v[{4+4*i}:{7+4*i}], s[8:9] offset:{16*i}")
    e(f"    s_mul_i32 s34, s{24+q}, {k}")
    e("    s_min_u32 s34, s34, 1000000")
    e("    s_memrealtime s[36:37]")
    e("    s_waitcnt lgkmcnt(0)")
    e("LR_spin:")
    e("    s_memrealtime s[38:39]")
    e("    s_waitcnt lgkmcnt(0)")
    e("    s_sub_u32 s35, s38, s36")
    e("    s_cmp_lt_u32 s35, s34")
    e("    s_cbranch_scc1 LR_spin")
    e("LR_done:")
    e("    s_endpgm")
    def kd(n): return f""".p2align 6
.amdhsa_kernel {n}
  .amdhsa_next_free_vgpr 24
  .amdhsa_next_free_sgpr 48
  .amdhsa_accum_offset 24
  .amdhsa_group_segment_fixed_size 0
  .amdhsa_kernarg_size 48
  .amdhsa_user_sgpr_count 2
  .amdhsa_user_sgpr_kernarg_segment_ptr 1
  .amdhsa_system_sgpr_workgroup_id_x 1
.end_amdhsa_kernel
"""
    asm = asm.replace('.section .rodata,"a"', "\n".join(body) + '\n.section .rodata,"a"')
    asm = asm.rstrip() + "\n" + kd("probe_kernel") + kd("report_kernel")
    return asm

if __name__ == "__main__":
    src, q, k, out = sys.argv[1], int(sys.argv[2]), int(sys.argv[3]), sys.argv[4]
    open(out, "w").write(wrap(open(src).read(), q, k))
```

```python
import re, sys
NAME = "standalone__instancenorm__sampling_kernel"

def wrap(asm, q, k):
    m = re.search(r"; @launch grid=\((\d+),1,1\) block=\((\d+),1,1\) lds=(\d+)", asm)
    g, b, lds = m.groups()
    asm = asm.replace(m.group(0), f"; @launch kernel=probe_kernel grid=(1,1,1) block=(64,1,1) lds=0\n; @launch kernel={NAME} grid=({g},1,1) block=({b},1,1) lds={lds}\n; @launch kernel=report_kernel grid=(1,1,1) block=(64,1,1) lds=0")
    body = []
    e = body.append
    def head(n):
        e(".text"); e(f".globl {n}"); e(".p2align 8"); e(f".type {n},@function"); e(f"{n}:")
    head("probe_kernel")
    e("    s_load_dwordx2 s[4:5], s[0:1], 0")
    e("    s_load_dwordx2 s[6:7], s[0:1], 24")
    e("    s_load_dwordx2 s[8:9], s[0:1], 40")
    e("    s_cmp_ge_u32 s2, 1")
    e("    s_cbranch_scc1 LP_done")
    e("    s_waitcnt lgkmcnt(0)")
    for bi, (lo, mask, tot, lowc) in enumerate(((4, 40, 41, 44), (6, 42, 43, 45))):
        e(f"    s_mov_b32 s{mask}, 0")
        e(f"    s_mov_b32 s{tot}, 0")
        e(f"    s_mov_b32 s{lowc}, 0")
        e("    s_mov_b32 s10, 0")
        e(f"LP_page{bi}:")
        e("    s_lshl_b32 s11, s10, 21")
        e(f"    s_add_u32 s12, s{lo}, s11")
        e(f"    s_addc_u32 s13, s{lo+1}, 0")
        e("    s_load_dword s14, s[12:13], 0x8080")
        e("    s_waitcnt lgkmcnt(0)")
        e("    s_mov_b32 s30, 0")
        e("    s_mov_b32 s31, 0")
        for l in range(8):
            for c in range(2):
                off = (l << 8) | ((l & 1) << 11) | ((l & 2) << 11) | ((l & 4) << 12) | (c << 13)
                e("    s_memtime s[16:17]")
                e("    s_waitcnt lgkmcnt(0)")
                e(f"    s_load_dword s14, s[12:13], {off}")
                e("    s_waitcnt lgkmcnt(0)")
                e("    s_memtime s[18:19]")
                e("    s_waitcnt lgkmcnt(0)")
                e("    s_sub_u32 s20, s18, s16")
                e(f"    s_add_u32 s{30+c}, s{30+c}, s20")
                e("    s_cmp_lt_u32 s20, 800")
                e(f"    s_addc_u32 s{lowc}, s{lowc}, 0")
        e(f"    s_add_u32 s{tot}, s{tot}, s30")
        e(f"    s_add_u32 s{tot}, s{tot}, s31")
        e("    s_cmp_gt_u32 s30, s31")
        e("    s_cselect_b32 s21, 1, 0")
        e("    s_lshl_b32 s21, s21, s10")
        e(f"    s_or_b32 s{mask}, s{mask}, s21")
        e("    s_add_u32 s10, s10, 1")
        e("    s_cmp_lt_u32 s10, 32")
        e(f"    s_cbranch_scc1 LP_page{bi}")
        e(f"    s_lshr_b32 s{tot}, s{tot}, 9")
    e("    s_getreg_b32 s46, hwreg(HW_REG_XCC_ID)")
    e("    v_mov_b32 v0, 0")
    for i in range(8):
        src = [40, 41, 42, 43, 44, 45, 46, 46][i]
        e(f"    v_mov_b32 v{4+i}, s{src}")
    e("    s_mov_b64 exec, 1")
    e("    global_store_dwordx4 v0, v[4:7], s[8:9]")
    e("    global_store_dwordx4 v0, v[8:11], s[8:9] offset:16")
    e("LP_done:")
    e("    s_endpgm")
    head("report_kernel")
    e("    s_load_dwordx2 s[4:5], s[0:1], 0")
    e("    s_load_dwordx2 s[6:7], s[0:1], 24")
    e("    s_load_dwordx4 s[8:11], s[0:1], 32")
    e("    s_cmp_ge_u32 s2, 1")
    e("    s_cbranch_scc1 LR_done")
    e("    s_waitcnt lgkmcnt(0)")
    e("    s_load_dwordx8 s[16:23], s[10:11], 0")
    e("    s_waitcnt lgkmcnt(0)")
    e("    s_xor_b32 s24, s16, 0xaaaaaaaa")
    e("    s_bcnt1_i32_b32 s24, s24")
    e("    s_xor_b32 s25, s18, 0xaaaaaaaa")
    e("    s_bcnt1_i32_b32 s25, s25")
    e("    s_xor_b32 s26, s16, s18")
    e("    s_bcnt1_i32_b32 s26, s26")
    e("    s_mov_b32 s27, s17")
    e("    s_mov_b32 s28, s19")
    e("    s_bfe_u32 s29, s6, 0x60015")
    e("    s_bfe_u32 s30, s4, 0x60015")
    e("    s_mul_i32 s31, s24, 40")
    e("    s_add_u32 s31, s31, s25")
    e("    v_mov_b32 v0, 0")
    e("    s_and_b32 s32, s6, 0x1fffff")
    e("    s_lshr_b32 s32, s32, 8")
    e("    s_and_b32 s33, s32, 63")
    e("    s_load_dwordx4 s[40:43], s[0:1], 8")
    e("    s_waitcnt lgkmcnt(0)")
    for i in range(16):
        src = [16,17,18,19,22,4,6,40,42,8,10,24,25,26,32,33][i]
        e(f"    v_mov_b32 v{4+i}, s{src}")
    e("    s_mov_b64 exec, 1")
    for i in range(4):
        e(f"    global_store_dwordx4 v0, v[{4+4*i}:{7+4*i}], s[8:9] offset:{16*i}")
    e(f"    s_mul_i32 s34, s{24+q}, {k}")
    e("    s_min_u32 s34, s34, 1000000")
    e("    s_memrealtime s[36:37]")
    e("    s_waitcnt lgkmcnt(0)")
    e("LR_spin:")
    e("    s_memrealtime s[38:39]")
    e("    s_waitcnt lgkmcnt(0)")
    e("    s_sub_u32 s35, s38, s36")
    e("    s_cmp_lt_u32 s35, s34")
    e("    s_cbranch_scc1 LR_spin")
    e("LR_done:")
    e("    s_endpgm")
    def kd(n): return f""".p2align 6
.amdhsa_kernel {n}
  .amdhsa_next_free_vgpr 24
  .amdhsa_next_free_sgpr 48
  .amdhsa_accum_offset 24
  .amdhsa_group_segment_fixed_size 0
  .amdhsa_kernarg_size 48
  .amdhsa_user_sgpr_count 2
  .amdhsa_user_sgpr_kernarg_segment_ptr 1
  .amdhsa_system_sgpr_workgroup_id_x 1
.end_amdhsa_kernel
"""
    asm = asm.replace('.section .rodata,"a"', "\n".join(body) + '\n.section .rodata,"a"')
    asm = asm.rstrip() + "\n" + kd("probe_kernel") + kd("report_kernel")
    return asm

if __name__ == "__main__":
    src, q, k, out = sys.argv[1], int(sys.argv[2]), int(sys.argv[3]), sys.argv[4]
    open(out, "w").write(wrap(open(src).read(), q, k))
```

```python
import re, sys
NAME = "standalone__instancenorm__sampling_kernel"

def wrap(asm, nwaves, q, k, gid_sgpr="s12", at=None):
    m = re.search(r"; @launch grid=\((\d+),1,1\) block=\((\d+),1,1\) lds=(\d+)", asm)
    g, b, lds = m.groups()
    asm = asm.replace(m.group(0), f"; @launch kernel={NAME} grid=({g},1,1) block=({b},1,1) lds={lds}\n; @launch kernel=diagb_kernel grid=(1,1,1) block=(1024,1,1) lds=64")
    asm = asm.replace(f"{NAME}:\n", f"{NAME}:\n    s_memrealtime s[40:41]\n    s_load_dwordx2 s[44:45], s[0:1], 40\n")
    endstamp = "    s_waitcnt vmcnt(0)\n    s_memrealtime s[42:43]\n"
    if at is not None:
        i = asm.index(at); i = asm.index("\n", i) + 1
        asm = asm[:i] + "    s_memrealtime s[42:43]\n" + asm[i:]
        endstamp = ""
    asm = asm.replace("L_done:\n", endstamp + f"""    s_lshl_b32 s46, {gid_sgpr}, 3
    v_mov_b32 v0, s46
    s_waitcnt lgkmcnt(0)
    v_mov_b32 v2, s40
    v_mov_b32 v3, s42
    s_mov_b64 exec, 1
    global_store_dwordx2 v0, v[2:3], s[44:45]
L_done:
""")
    asm = re.sub(r"\.amdhsa_next_free_sgpr \d+", ".amdhsa_next_free_sgpr 48", asm)
    per = nwaves // 1024
    body = []
    e = body.append
    e(".text")
    e(".globl diagb_kernel")
    e(".p2align 8")
    e(".type diagb_kernel,@function")
    e("diagb_kernel:")
    e("    s_memrealtime s[20:21]")
    e("    s_load_dwordx4 s[4:7], s[0:1], 32")
    e("    s_cmp_ge_u32 s2, 1")
    e("    s_cbranch_scc1 LB_done")
    e("    v_lshlrev_b32 v1, 3, v0")
    e("    v_mov_b32 v4, -1")
    e("    v_mov_b32 v5, 0")
    e("    v_mov_b32 v6, -1")
    e("    v_mov_b32 v7, 0")
    e("    v_mov_b32 v8, 0")
    e("    ds_write_b128 v8, v[4:7]")
    e("    s_waitcnt lgkmcnt(0)")
    e("    s_barrier")
    for i in range(per):
        e("    global_load_dwordx2 v[2:3], v1, s[6:7]")
        e("    v_add_u32 v1, 8192, v1")
        e("    s_waitcnt vmcnt(0)")
        e("    v_min_u32 v4, v4, v2")
        e("    v_max_u32 v5, v5, v2")
        e("    v_min_u32 v6, v6, v3")
        e("    v_max_u32 v7, v7, v3")
    e("    ds_min_u32 v8, v4")
    e("    ds_max_u32 v8, v5 offset:4")
    e("    ds_min_u32 v8, v6 offset:8")
    e("    ds_max_u32 v8, v7 offset:12")
    e("    s_waitcnt lgkmcnt(0)")
    e("    s_barrier")
    e("    ds_read_b128 v[4:7], v8")
    e("    s_waitcnt lgkmcnt(0)")
    e("    v_readfirstlane_b32 s8, v4")
    e("    v_readfirstlane_b32 s9, v5")
    e("    v_readfirstlane_b32 s10, v6")
    e("    v_readfirstlane_b32 s11, v7")
    e("    s_nop 3")
    e("    s_sub_u32 s12, s11, s8")
    e("    s_sub_u32 s13, s20, s11")
    e("    s_sub_u32 s14, s9, s8")
    e("    s_sub_u32 s15, s10, s8")
    e("    s_sub_u32 s27, s20, s8")
    e("    v_mov_b32 v4, s12")
    e("    v_mov_b32 v5, s13")
    e("    v_mov_b32 v6, s14")
    e("    v_mov_b32 v7, s15")
    e("    v_cmp_eq_u32 vcc, 0, v0")
    e("    s_and_saveexec_b64 s[16:17], vcc")
    e("    s_cbranch_execz LB_done")
    e("    global_store_dwordx4 v8, v[4:7], s[4:5] offset:-512")
    e("    global_store_dwordx4 v8, v[4:7], s[4:5]")
    e(f"    s_mul_i32 s18, s{27 if q == 5 else 11+q}, {k}")
    e("    s_min_u32 s18, s18, 100000")
    e("    s_memrealtime s[22:23]")
    e("    s_waitcnt lgkmcnt(0)")
    e("LB_spin:")
    e("    s_memrealtime s[24:25]")
    e("    s_waitcnt lgkmcnt(0)")
    e("    s_sub_u32 s26, s24, s22")
    e("    s_cmp_lt_u32 s26, s18")
    e("    s_cbranch_scc1 LB_spin")
    e("LB_done:")
    e("    s_endpgm")
    kd = """.amdhsa_kernel diagb_kernel
  .amdhsa_next_free_vgpr 16
  .amdhsa_next_free_sgpr 32
  .amdhsa_accum_offset 16
  .amdhsa_group_segment_fixed_size 0
  .amdhsa_kernarg_size 48
  .amdhsa_user_sgpr_count 2
  .amdhsa_user_sgpr_kernarg_segment_ptr 1
  .amdhsa_system_sgpr_workgroup_id_x 1
.end_amdhsa_kernel
"""
    asm = asm.replace('.section .rodata,"a"', "\n".join(body) + '\n.section .rodata,"a"')
    asm = asm.rstrip() + "\n.p2align 6\n" + kd
    return asm

if __name__ == "__main__":
    src, nw, q, k, out = sys.argv[1], int(sys.argv[2]), int(sys.argv[3]), int(sys.argv[4]), sys.argv[5]
    at = sys.argv[6] if len(sys.argv) > 6 else None
    open(out, "w").write(wrap(open(src).read(), nw, q, k, at=at))
```

```python
import re, sys
NAME = "standalone__instancenorm__sampling_kernel"

def wrap(asm, nwaves, q, k, gid_sgpr="s12", at=None):
    m = re.search(r"; @launch grid=\((\d+),1,1\) block=\((\d+),1,1\) lds=(\d+)", asm)
    g, b, lds = m.groups()
    asm = asm.replace(m.group(0), f"; @launch kernel={NAME} grid=({g},1,1) block=({b},1,1) lds={lds}\n; @launch kernel=diagb_kernel grid=(1,1,1) block=(1024,1,1) lds=64")
    asm = asm.replace(f"{NAME}:\n", f"{NAME}:\n    s_memrealtime s[40:41]\n    s_load_dwordx2 s[44:45], s[0:1], 40\n    s_mov_b32 s47, 0\n")
    endstamp = "    s_waitcnt vmcnt(0)\n    s_memrealtime s[42:43]\n"
    if at is not None:
        i = asm.index(at); i = asm.index("\n", i) + 1
        asm = asm[:i] + "    s_memrealtime s[42:43]\n" + asm[i:]
        endstamp = ""
    asm = asm.replace("L_done:\n", endstamp + f"""    s_lshl_b32 s46, {gid_sgpr}, 3
    v_mov_b32 v0, s46
    s_waitcnt lgkmcnt(0)
    v_mov_b32 v2, s40
    v_mov_b32 v3, s42
    s_mov_b64 exec, 1
    global_store_dwordx2 v0, v[2:3], s[44:45]
    s_getreg_b32 s46, hwreg(HW_REG_XCC_ID)
    s_and_b32 s46, s46, 15
    s_lshl_b32 s46, s46, 4
    s_or_b32 s46, s46, s47
    v_mov_b32 v2, s46
    v_lshrrev_b32 v0, 1, v0
    v_add_u32 v0, 0x100000, v0
    global_store_dword v0, v2, s[44:45]
L_done:
""")
    asm = re.sub(r"\.amdhsa_next_free_sgpr \d+", ".amdhsa_next_free_sgpr 64", asm)
    per = nwaves // 1024
    body = []
    e = body.append
    e(".text")
    e(".globl diagb_kernel")
    e(".p2align 8")
    e(".type diagb_kernel,@function")
    e("diagb_kernel:")
    e("    s_memrealtime s[20:21]")
    e("    s_load_dwordx4 s[4:7], s[0:1], 32")
    e("    s_cmp_ge_u32 s2, 1")
    e("    s_cbranch_scc1 LB_done")
    e("    v_lshlrev_b32 v1, 3, v0")
    e("    v_mov_b32 v4, -1")
    e("    v_mov_b32 v5, 0")
    e("    v_mov_b32 v6, -1")
    e("    v_mov_b32 v7, 0")
    e("    v_mov_b32 v8, 0")
    e("    ds_write_b128 v8, v[4:7]")
    e("    v_mov_b32 v10, 0")
    e("    v_mov_b32 v11, 0")
    e("    v_mov_b32 v14, 0")
    e("    v_mov_b32 v15, 0")
    e("    ds_write_b64 v8, v[10:11] offset:16")
    e("    ds_write_b64 v8, v[10:11] offset:24")
    e("    v_lshlrev_b32 v12, 2, v0")
    e("    v_add_u32 v12, 0x100000, v12")
    e("    s_waitcnt lgkmcnt(0)")
    e("    s_barrier")
    for i in range(per):
        e("    global_load_dwordx2 v[2:3], v1, s[6:7]")
        e("    v_add_u32 v1, 8192, v1")
        e("    global_load_dword v13, v12, s[6:7]")
        e("    v_add_u32 v12, 4096, v12")
        e("    s_waitcnt vmcnt(0)")
        e("    v_and_b32 v9, 1, v13")
        e("    v_add_u32 v10, v10, v9")
        e("    v_bfe_u32 v9, v13, 1, 1")
        e("    v_add_u32 v11, v11, v9")
        e("    v_bfe_u32 v9, v13, 8, 12")
        e("    v_add_u32 v14, v14, v9")
        e("    v_bfe_u32 v9, v13, 20, 12")
        e("    v_add_u32 v15, v15, v9")
        e("    v_min_u32 v4, v4, v2")
        e("    v_max_u32 v5, v5, v2")
        e("    v_min_u32 v6, v6, v3")
        e("    v_max_u32 v7, v7, v3")
    e("    ds_add_u32 v8, v10 offset:16")
    e("    ds_add_u32 v8, v11 offset:20")
    e("    ds_add_u32 v8, v14 offset:24")
    e("    ds_add_u32 v8, v15 offset:28")
    e("    ds_min_u32 v8, v4")
    e("    ds_max_u32 v8, v5 offset:4")
    e("    ds_min_u32 v8, v6 offset:8")
    e("    ds_max_u32 v8, v7 offset:12")
    e("    s_waitcnt lgkmcnt(0)")
    e("    s_barrier")
    e("    ds_read_b128 v[4:7], v8")
    e("    ds_read_b128 v[12:15], v8 offset:16")
    e("    s_waitcnt lgkmcnt(0)")
    e("    v_readfirstlane_b32 s28, v12")
    e("    v_readfirstlane_b32 s29, v13")
    e("    v_readfirstlane_b32 s30, v14")
    e("    v_readfirstlane_b32 s31, v15")
    e("    v_readfirstlane_b32 s8, v4")
    e("    v_readfirstlane_b32 s9, v5")
    e("    v_readfirstlane_b32 s10, v6")
    e("    v_readfirstlane_b32 s11, v7")
    e("    s_nop 3")
    e("    s_sub_u32 s12, s11, s8")
    e("    s_sub_u32 s13, s20, s11")
    e("    s_sub_u32 s14, s9, s8")
    e("    s_sub_u32 s15, s10, s8")
    e("    s_sub_u32 s27, s20, s8")
    e("    v_mov_b32 v4, s12")
    e("    v_mov_b32 v5, s13")
    e("    v_mov_b32 v6, s14")
    e("    v_mov_b32 v7, s15")
    e("    v_cmp_eq_u32 vcc, 0, v0")
    e("    s_and_saveexec_b64 s[16:17], vcc")
    e("    s_cbranch_execz LB_done")
    e("    global_store_dwordx4 v8, v[4:7], s[4:5] offset:-512")
    e("    global_store_dwordx4 v8, v[4:7], s[4:5]")
    e("    global_store_dwordx4 v8, v[12:15], s[4:5] offset:16")
    e("    global_store_dwordx4 v8, v[12:15], s[4:5] offset:-496")
    e(f"    s_mul_i32 s18, s{22+q if q >= 5 else 11+q}, {k}")
    e("    s_min_u32 s18, s18, 400000")
    e("    s_memrealtime s[22:23]")
    e("    s_waitcnt lgkmcnt(0)")
    e("LB_spin:")
    e("    s_memrealtime s[24:25]")
    e("    s_waitcnt lgkmcnt(0)")
    e("    s_sub_u32 s26, s24, s22")
    e("    s_cmp_lt_u32 s26, s18")
    e("    s_cbranch_scc1 LB_spin")
    e("LB_done:")
    e("    s_endpgm")
    kd = """.amdhsa_kernel diagb_kernel
  .amdhsa_next_free_vgpr 16
  .amdhsa_next_free_sgpr 32
  .amdhsa_accum_offset 16
  .amdhsa_group_segment_fixed_size 0
  .amdhsa_kernarg_size 48
  .amdhsa_user_sgpr_count 2
  .amdhsa_user_sgpr_kernarg_segment_ptr 1
  .amdhsa_system_sgpr_workgroup_id_x 1
.end_amdhsa_kernel
"""
    asm = asm.replace('.section .rodata,"a"', "\n".join(body) + '\n.section .rodata,"a"')
    asm = asm.rstrip() + "\n.p2align 6\n" + kd
    return asm

if __name__ == "__main__":
    src, nw, q, k, out = sys.argv[1], int(sys.argv[2]), int(sys.argv[3]), int(sys.argv[4]), sys.argv[5]
    at = sys.argv[6] if len(sys.argv) > 6 else None
    open(out, "w").write(wrap(open(src).read(), nw, q, k, at=at))
```

```python
import re, sys
NAME = "standalone__instancenorm__sampling_kernel"

def wrap(asm, nwaves, q, k, gid_sgpr="s12", at=None):
    m = re.search(r"; @launch grid=\((\d+),1,1\) block=\((\d+),1,1\) lds=(\d+)", asm)
    g, b, lds = m.groups()
    asm = asm.replace(m.group(0), f"; @launch kernel={NAME} grid=({g},1,1) block=({b},1,1) lds={lds}\n; @launch kernel=diagb_kernel grid=(1,1,1) block=(1024,1,1) lds=64")
    asm = asm.replace(f"{NAME}:\n", f"{NAME}:\n    s_memrealtime s[40:41]\n    s_load_dwordx2 s[44:45], s[0:1], 40\n    s_mov_b32 s47, 0\n")
    endstamp = "    s_waitcnt vmcnt(0)\n    s_memrealtime s[42:43]\n"
    if at is not None:
        i = asm.index(at); i = asm.index("\n", i) + 1
        asm = asm[:i] + "    s_memrealtime s[42:43]\n" + asm[i:]
        endstamp = ""
    asm = asm.replace("L_done:\n", endstamp + f"""    s_lshl_b32 s46, {gid_sgpr}, 3
    v_mov_b32 v0, s46
    s_waitcnt lgkmcnt(0)
    v_mov_b32 v2, s40
    v_mov_b32 v3, s42
    s_mov_b64 exec, 1
    global_store_dwordx2 v0, v[2:3], s[44:45]
    s_getreg_b32 s46, hwreg(HW_REG_XCC_ID)
    s_and_b32 s46, s46, 15
    s_lshl_b32 s46, s46, 4
    s_or_b32 s46, s46, s47
    v_mov_b32 v2, s46
    v_lshrrev_b32 v0, 1, v0
    v_add_u32 v0, 0x100000, v0
    global_store_dword v0, v2, s[44:45]
L_done:
""")
    asm = re.sub(r"\.amdhsa_next_free_sgpr \d+", ".amdhsa_next_free_sgpr 64", asm)
    per = nwaves // 1024
    body = []
    e = body.append
    e(".text")
    e(".globl diagb_kernel")
    e(".p2align 8")
    e(".type diagb_kernel,@function")
    e("diagb_kernel:")
    e("    s_memrealtime s[20:21]")
    e("    s_load_dwordx4 s[4:7], s[0:1], 32")
    e("    s_cmp_ge_u32 s2, 1")
    e("    s_cbranch_scc1 LB_done")
    e("    v_lshlrev_b32 v1, 3, v0")
    e("    v_mov_b32 v4, -1")
    e("    v_mov_b32 v5, 0")
    e("    v_mov_b32 v6, -1")
    e("    v_mov_b32 v7, 0")
    e("    v_mov_b32 v8, 0")
    e("    ds_write_b128 v8, v[4:7]")
    e("    v_mov_b32 v10, 0")
    e("    v_mov_b32 v11, 0")
    e("    v_mov_b32 v14, 0")
    e("    v_mov_b32 v15, 0")
    e("    ds_write_b64 v8, v[10:11] offset:16")
    e("    ds_write_b64 v8, v[10:11] offset:24")
    e("    v_lshlrev_b32 v12, 2, v0")
    e("    v_add_u32 v12, 0x100000, v12")
    e("    s_waitcnt lgkmcnt(0)")
    e("    s_barrier")
    for i in range(per):
        e("    global_load_dwordx2 v[2:3], v1, s[6:7]")
        e("    v_add_u32 v1, 8192, v1")
        e("    global_load_dword v13, v12, s[6:7]")
        e("    v_add_u32 v12, 4096, v12")
        e("    s_waitcnt vmcnt(0)")
        e("    v_and_b32 v9, 1, v13")
        e("    v_add_u32 v10, v10, v9")
        e("    v_bfe_u32 v9, v13, 1, 1")
        e("    v_add_u32 v11, v11, v9")
        e("    v_bfe_u32 v9, v13, 8, 12")
        e("    v_add_u32 v14, v14, v9")
        e("    v_bfe_u32 v9, v13, 20, 12")
        e("    v_add_u32 v15, v15, v9")
        e("    v_min_u32 v4, v4, v2")
        e("    v_max_u32 v5, v5, v2")
        e("    v_min_u32 v6, v6, v3")
        e("    v_max_u32 v7, v7, v3")
    e("    ds_add_u32 v8, v10 offset:16")
    e("    ds_add_u32 v8, v11 offset:20")
    e("    ds_add_u32 v8, v14 offset:24")
    e("    ds_add_u32 v8, v15 offset:28")
    e("    ds_min_u32 v8, v4")
    e("    ds_max_u32 v8, v5 offset:4")
    e("    ds_min_u32 v8, v6 offset:8")
    e("    ds_max_u32 v8, v7 offset:12")
    e("    s_waitcnt lgkmcnt(0)")
    e("    s_barrier")
    e("    ds_read_b128 v[4:7], v8")
    e("    ds_read_b128 v[12:15], v8 offset:16")
    e("    s_waitcnt lgkmcnt(0)")
    e("    v_readfirstlane_b32 s28, v12")
    e("    v_readfirstlane_b32 s29, v13")
    e("    v_readfirstlane_b32 s30, v14")
    e("    v_readfirstlane_b32 s31, v15")
    e("    v_readfirstlane_b32 s8, v4")
    e("    v_readfirstlane_b32 s9, v5")
    e("    v_readfirstlane_b32 s10, v6")
    e("    v_readfirstlane_b32 s11, v7")
    e("    s_nop 3")
    e("    s_add_u32 s34, s28, 128")
    e("    s_lshr_b32 s34, s34, 8")
    e("    s_mul_i32 s34, s34, 100000")
    e("    s_lshr_b32 s32, s30, 8")
    e("    s_mul_i32 s32, s32, 50")
    e("    s_add_u32 s32, s32, s34")
    e("    s_lshr_b32 s33, s31, 8")
    e("    s_mul_i32 s33, s33, 200")
    e("    s_add_u32 s33, s33, s34")
    e("    s_sub_u32 s12, s11, s8")
    e("    s_sub_u32 s13, s20, s11")
    e("    s_sub_u32 s14, s9, s8")
    e("    s_sub_u32 s15, s10, s8")
    e("    s_sub_u32 s27, s20, s8")
    e("    v_mov_b32 v4, s12")
    e("    v_mov_b32 v5, s13")
    e("    v_mov_b32 v6, s14")
    e("    v_mov_b32 v7, s15")
    e("    v_cmp_eq_u32 vcc, 0, v0")
    e("    s_and_saveexec_b64 s[16:17], vcc")
    e("    s_cbranch_execz LB_done")
    e("    global_store_dwordx4 v8, v[4:7], s[4:5] offset:-512")
    e("    global_store_dwordx4 v8, v[4:7], s[4:5]")
    e("    global_store_dwordx4 v8, v[12:15], s[4:5] offset:16")
    e("    global_store_dwordx4 v8, v[12:15], s[4:5] offset:-496")
    e(f"    s_mul_i32 s18, s{22+q if q >= 5 else 11+q}, {k}")
    e("    s_min_u32 s18, s18, 1000000")
    e("    s_memrealtime s[22:23]")
    e("    s_waitcnt lgkmcnt(0)")
    e("LB_spin:")
    e("    s_memrealtime s[24:25]")
    e("    s_waitcnt lgkmcnt(0)")
    e("    s_sub_u32 s26, s24, s22")
    e("    s_cmp_lt_u32 s26, s18")
    e("    s_cbranch_scc1 LB_spin")
    e("LB_done:")
    e("    s_endpgm")
    kd = """.amdhsa_kernel diagb_kernel
  .amdhsa_next_free_vgpr 16
  .amdhsa_next_free_sgpr 40
  .amdhsa_accum_offset 16
  .amdhsa_group_segment_fixed_size 0
  .amdhsa_kernarg_size 48
  .amdhsa_user_sgpr_count 2
  .amdhsa_user_sgpr_kernarg_segment_ptr 1
  .amdhsa_system_sgpr_workgroup_id_x 1
.end_amdhsa_kernel
"""
    asm = asm.replace('.section .rodata,"a"', "\n".join(body) + '\n.section .rodata,"a"')
    asm = asm.rstrip() + "\n.p2align 6\n" + kd
    return asm

if __name__ == "__main__":
    src, nw, q, k, out = sys.argv[1], int(sys.argv[2]), int(sys.argv[3]), int(sys.argv[4]), sys.argv[5]
    at = sys.argv[6] if len(sys.argv) > 6 else None
    open(out, "w").write(wrap(open(src).read(), nw, q, k, at=at))
```
